```python
import torch

def _softmax(x, axis=-1):
    return torch.softmax(x, dim=axis)
def _gelu(x):
    return torch.nn.functional.gelu(x, approximate="tanh")
def _silu(x):
    return torch.nn.functional.silu(x)
def _sigmoid(x):
    return torch.sigmoid(x)
def _layernorm(x, axis=-1, eps=1e-5):
    m = x.mean(dim=axis, keepdim=True)
    v = x.var(dim=axis, keepdim=True, unbiased=False)
    return (x - m) / torch.sqrt(v + eps)
def _scatter_add(tgt, idx, src, axis=0):
    return tgt.clone().index_add_(axis, idx, src)
def _segment_sum(src, seg, n):
    out = torch.zeros((n,) + src.shape[1:], dtype=src.dtype)
    return out.index_add_(0, seg, src)
def _pad(x, pw):
    flat = tuple(v for pair in reversed(pw) for v in pair)
    return torch.nn.functional.pad(x, flat)

kernel_name = 'concat_heads__ssm_conv_h3__grouped_kv_mqa__prompt'

def setup_inputs():

    _w = (lambda a: (lambda t: t.to(torch.bfloat16) if t.is_floating_point() else t)(torch.as_tensor(a)))
    def _A_setup():
        B, S, D = 1, 2048, 576
        ks = 4
        return {
            "q": _w((lambda *s: torch.randn(*s, dtype=torch.bfloat16) * 0.05)(B, S, D)),
            "k": _w((lambda *s: torch.randn(*s, dtype=torch.bfloat16) * 0.2)(B, S, D)),
            "v": _w((lambda *s: torch.randn(*s, dtype=torch.bfloat16) * 0.2)(B, S, D)),
            "shift_k": _w((lambda *s: torch.randn(*s, dtype=torch.bfloat16) * 0.2)(D, ks) * 0.5),
            "ssm_k": _w((lambda *s: torch.randn(*s, dtype=torch.bfloat16) * 0.8)(D, S) * (1.0 / S ** 0.5)),
            "ssm_D": _w((lambda *s: torch.randn(*s, dtype=torch.bfloat16) * 0.2)(D)),
        }
    _A_in = _A_setup()

    def _B_setup():
        B, S, D, H = 1, 2048, 576, 32
        Dh = D // H
        return {
            "x": _w((lambda *s: torch.randn(*s, dtype=torch.bfloat16) * 0.05)(B, S, D)),
            "wq": _w((lambda *s: torch.randn(*s, dtype=torch.bfloat16) * 0.8)(D, H * Dh)),
            "wk": _w((lambda *s: torch.randn(*s, dtype=torch.bfloat16) * 0.8)(D, Dh)),
            "wv": _w((lambda *s: torch.randn(*s, dtype=torch.bfloat16) * 0.05)(D, Dh)),
            "wo": _w((lambda *s: torch.randn(*s, dtype=torch.bfloat16) * 0.05)(H * Dh, D)),
        }
    _B_in = _B_setup()

    return {
        "A_q": _A_in["q"],
        "A_k": _A_in["k"],
        "A_v": _A_in["v"],
        "A_shift_k": _A_in["shift_k"],
        "A_ssm_k": _A_in["ssm_k"],
        "A_ssm_D": _A_in["ssm_D"],
        "B_x": _B_in["x"],
        "B_wq": _B_in["wq"],
        "B_wk": _B_in["wk"],
        "B_wv": _B_in["wv"],
        "B_wo": _B_in["wo"],
    }

def reference(A_q, A_k, A_v, A_shift_k, A_ssm_k, A_ssm_D, B_x, B_wq, B_wk, B_wv, B_wo):
    def _A_ref(q, k, v, shift_k, ssm_k, ssm_D):
        B, S, D = q.shape
        ks = shift_k.shape[-1]
        k_pad = _pad(k, ((0, 0), (ks - 1, 0), (0, 0)))
        k_shift = torch.zeros_like(k)
        for t in range(ks):
            k_shift = k_shift + k_pad[:, t:t + S, :] * shift_k[:, ks - 1 - t][None, None, :]
        kv = k_shift * v
        L = 2 * S
        kv_pad = _pad(kv, ((0, 0), (0, S), (0, 0)))
        kf_pad = _pad(ssm_k, ((0, 0), (0, S)))
        kv_f = (lambda x, axes=(-2,-1): torch.fft.rfft2(x.float(), dim=axes))(kv_pad[:, None, :, :], axes=(1, 2))
        kf_f = (lambda x, axes=(-2,-1): torch.fft.rfft2(x.float(), dim=axes))(kf_pad[:, None, :], axes=(1, 2))
        kf_f = (lambda x, *d: x.permute(*d))(kf_f, 1, 2, 0)
        y_f = kv_f * kf_f[None, :, :, :]
        y = (lambda x, s, axes=(-2,-1): torch.fft.irfft2(x, s=s, dim=axes).to(torch.bfloat16))(y_f, (1, L), axes=(1, 2))[:, 0, :S, :]
        y = y + kv * ssm_D[None, None, :]
        return q * y

    def _B_ref(x, wq, wk, wv, wo):
        B, S, D = x.shape
        H = 32
        Dh = D // H
        q = (lambda x, *d: x.permute(*d))((x @ wq).reshape(B, S, H, Dh), 0, 2, 1, 3)
        k = x @ wk
        v = x @ wv
        scores = torch.einsum("bhqd,bkd->bhqk", q, k) * (Dh ** -0.5)
        p = _softmax(scores, axis=-1)
        o = torch.einsum("bhqk,bkd->bhqd", p, v)
        return (lambda x, *d: x.permute(*d))(o, 0, 2, 1, 3).reshape(B, S, H * Dh) @ wo

    a = _A_ref(A_q, A_k, A_v, A_shift_k, A_ssm_k, A_ssm_D)
    b = _B_ref(B_x, B_wq, B_wk, B_wv, B_wo)
    return torch.concatenate([a, b], axis=-1)
```

```python
import sys
HEAD = """; @launch grid=({grid},1,1) block=({block},1,1) lds={lds}
.amdgcn_target "amdgcn-amd-amdhsa--gfx950"
.text
.globl mb_kernel
.p2align 8
.type mb_kernel,@function
mb_kernel:
    s_load_dwordx4 s[4:7], s[0:1], 0
    v_lshrrev_b32 v1, 6, v0
    s_nop 1
    v_readfirstlane_b32 s20, v1
    s_waitcnt lgkmcnt(0)
    s_mov_b32 s8, s4
    s_mov_b32 s9, s5
    s_mov_b32 s10, 0x1000000
    s_mov_b32 s11, 0x20000
    s_mov_b32 s12, s6
    s_mov_b32 s13, s7
    s_mov_b32 s14, 0x1000000
    s_mov_b32 s15, 0x20000
    v_lshlrev_b32 v2, 2, v0
"""
TAIL = """
    s_memtime s[26:27]
    s_memrealtime s[30:31]
    s_waitcnt lgkmcnt(0)
    s_sub_u32 s26, s26, s24
    s_sub_u32 s30, s30, s28
    s_mul_i32 s21, s2, {wpb}
    s_add_u32 s21, s21, s20
    s_lshl_b32 s21, s21, 4
    v_mov_b32 v1, s21
    v_mov_b32 v2, s26
    v_mov_b32 v3, s30
    v_mov_b32 v4, 0
    v_mov_b32 v5, 0
    v_mbcnt_lo_u32_b32 v6, -1, 0
    v_mbcnt_hi_u32_b32 v6, -1, v6
    v_cmp_eq_u32 vcc, 0, v6
    s_and_saveexec_b64 s[40:41], vcc
    buffer_store_dwordx4 v[2:5], v1, s[8:11], 0 offen
    s_waitcnt vmcnt(0)
    s_endpgm
.section .rodata,"a"
.p2align 6
.amdhsa_kernel mb_kernel
  .amdhsa_next_free_vgpr {vgpr}
  .amdhsa_next_free_sgpr 64
  .amdhsa_accum_offset {acc}
  .amdhsa_group_segment_fixed_size 0
  .amdhsa_kernarg_size 16
  .amdhsa_user_sgpr_count 2
  .amdhsa_user_sgpr_kernarg_segment_ptr 1
  .amdhsa_system_sgpr_workgroup_id_x 1
.end_amdhsa_kernel
"""
def make(path, bodies, iters=2000, grid=256, block=256, lds=0, vgpr=128, init=None, role=None):
    wpb = block // 64
    s = HEAD.format(grid=grid, block=block, lds=lds)
    s += "".join(f"    buffer_load_dword v{r}, v2, s[12:15], 0 offen offset:{(r*4*64)%4096}\n" for r in range(8, vgpr))
    s += "    s_waitcnt vmcnt(0)\n"
    if init: s += init
    s += "    s_barrier\n"
    s += "    s_memtime s[24:25]\n    s_memrealtime s[28:29]\n    s_waitcnt lgkmcnt(0)\n"
    s += f"    s_mov_b32 s22, {iters}\n"
    n = len(bodies)
    if n > 1:
        s += "    s_lshr_b32 s23, s20, 2\n"
        s += f"    s_and_b32 s23, s23, {n-1}\n"
        for i in range(1, n):
            s += f"    s_cmp_eq_u32 s23, {i}\n    s_cbranch_scc1 L_loop{i}\n"
    for i, b in enumerate(bodies):
        s += "    .p2align 6\n"
        s += f"L_loop{i}:\n" + b + f"\n    s_sub_u32 s22, s22, 1\n    s_cmp_lg_u32 s22, 0\n    s_cbranch_scc1 L_loop{i}\n    s_branch L_end\n"
    s += "L_end:\n    s_nop 15\n    s_nop 15\n"
    s += TAIL.format(wpb=wpb, vgpr=vgpr, acc=(vgpr + 3) // 4 * 4)
    open(path, "w").write(s)
```

```python
from mbgen import make
names = []
def mk(name, bodies, **kw):
    make(name, bodies, **kw); names.append(name)
def init(mul, copies=0):
    s = """
    v_and_b32 v3, 15, v0
    v_bfe_u32 v4, v0, 4, 2
    v_lshlrev_b32 v4, 4, v4
"""
    if copies == 0:
        s += f"    v_mul_u32_u24 v3, {mul}, v3\n    v_add_u32 v5, v3, v4\n"
    else:
        sh = {2: 1, 4: 2, 8: 3}[copies]
        s += f"    v_and_b32 v6, {copies-1}, v3\n    v_mul_u32_u24 v6, {mul}, v6\n    v_lshrrev_b32 v3, {sh}, v3\n    v_lshlrev_b32 v3, {sh+1}, v3\n    v_add3_u32 v5, v3, v4, v6\n"
    return s
body128 = "".join(f"    ds_read_b128 v[{16+4*i}:{19+4*i}], v5 offset:{64*i}\n" for i in range(16)) + "    s_waitcnt lgkmcnt(0)\n"
body64 = "".join(f"    ds_read_b64 v[{16+2*i}:{17+2*i}], v5 offset:{32*(i//2)*2+8*(i%2)}\n" for i in range(32)) + "    s_waitcnt lgkmcnt(0)\n"
body2x64 = "".join(f"    ds_read2_b64 v[{16+4*i}:{19+4*i}], v5 offset0:{8*i} offset1:{8*i+1}\n" for i in range(16)) + "    s_waitcnt lgkmcnt(0)\n"
for mul in (2, 4, 8, 16, 32):
    mk(f"l_b128_m{mul}.s", [body128], block=512, iters=1000, lds=65536, init=init(mul))
for mul in (2, 4, 8):
    mk(f"l_b64_m{mul}.s", [body64], block=512, iters=1000, lds=65536, init=init(mul))
for cs in (4096+16, 4096+32, 4096+64, 4096+80):
    mk(f"l_b128_c8_s{cs}.s", [body128], block=512, iters=1000, lds=65536, init=init(cs, 8))
for cs in (4096+64, 4096+96):
    mk(f"l_b128_c4_s{cs}.s", [body128], block=512, iters=1000, lds=65536, init=init(cs, 4))
    mk(f"l_b64_c4_s{cs}.s", [body64], block=512, iters=1000, lds=65536, init=init(cs, 4))
for cs in (4096+128,):
    mk(f"l_b128_c2_s{cs}.s", [body128], block=512, iters=1000, lds=65536, init=init(cs, 2))
open("listl.txt", "w").write(" ".join(names))
```

```python
from mbgen import make
names = []
def mk(name, bodies, **kw):
    make(name, bodies, **kw); names.append(name)
SA, SB = 16, 48
OA, OB = 80, 96
QA, QB = 112, 116
QX0, QX1 = 120, 122
KM = [124, 128]
KX = [132, 136]
VV = [140, 148]
IDX = 156
AK, AX, AV = 157, 158, 159
def step(n, pattern, ex=0):
    cur, nxt = (SA, SB) if n % 2 == 0 else (SB, SA)
    p = n % 2
    e = lambda i: f"    v_exp_f32 v{cur+i}, v{cur+i}\n"
    def pv(g, S, par):
        O = OA if g < 2 else OB
        V = VV[par] + 4 * (g % 2)
        return f"    v_smfmac_f32_32x32x32_bf16 v[{O}:{O+15}], v[{V}:{V+3}], v[{S+8*g}:{S+8*g+7}], v{IDX}\n"
    kxb = KX[((n + 1) // 4) % 2] + 2 * (((n + 1) % 4) // 2)
    qx = QX0 if (n + 1) % 2 == 0 else QX1
    X = f"    v_mfma_f32_32x32x4_2b_bf16 v[{nxt}:{nxt+31}], v[{kxb}:{kxb+1}], v[{qx}:{qx+1}], 0\n"
    km = KM[(n + 1) % 2]
    M0 = f"    v_mfma_f32_32x32x16_bf16 v[{nxt}:{nxt+15}], v[{km}:{km+3}], v[{QA}:{QA+3}], v[{nxt}:{nxt+15}]\n"
    M1 = f"    v_mfma_f32_32x32x16_bf16 v[{nxt+16}:{nxt+31}], v[{km}:{km+3}], v[{QB}:{QB+3}], v[{nxt+16}:{nxt+31}]\n"
    loads = "    s_waitcnt lgkmcnt(0)\n"
    vb = VV[(n + 1) % 2]
    if ex: loads += "    s_mov_b64 exec, s[44:45]\n"
    loads += f"    ds_read_b128 v[{vb}:{vb+3}], v{AV} offset:{16384 + (n%8)*2048}\n"
    loads += f"    ds_read_b128 v[{vb+4}:{vb+7}], v{AV} offset:{16384 + (n%8)*2048 + 1024}\n"
    if ex: loads += "    s_mov_b64 exec, -1\n"
    kb = KM[n % 2]
    loads += f"    ds_read_b128 v[{kb}:{kb+3}], v{AK} offset:{(n%8)*1024}\n"
    if n % 4 == 0:
        xb = KX[((n // 4) + 1) % 2]
        loads += f"    ds_read_b128 v[{xb}:{xb+3}], v{AX} offset:{40960 + (n%8)*128}\n"
    items = {"P3": pv(3, nxt, 1 - p), "X": X, "P0": pv(0, cur, p), "P1": pv(1, cur, p), "P2": pv(2, cur, p), "M0": M0, "M1": M1, "L": loads,
             "H": "    s_setprio 1\n", "Lo": "    s_setprio 0\n"}
    s = ""
    for i in range(33):
        for nm in pattern.get(i, []):
            s += items[nm]
        if i < 32: s += e(i)
    return s
init = f"""
    v_and_b32 v3, 63, v0
    v_lshlrev_b32 v{AK}, 4, v3
    v_lshlrev_b32 v{AV}, 4, v3
    v_and_b32 v3, 31, v0
    v_lshlrev_b32 v{AX}, 4, v3
    v_mov_b32 v{IDX}, 0xdddddddd
    v_lshlrev_b32 v4, 4, v0
    v_mov_b32 v8, 0x3c003c80
    v_xor_b32 v9, 0x80000000, v8
    v_mov_b32 v10, 0x3d00bc00
    v_mov_b32 v11, 0x3b80bd00
""" + "".join(f"    ds_write_b128 v4, v[8:11] offset:{i*8192}\n" for i in range(8)) + "".join(f"    v_mov_b32 v{r}, 0x3e003d80\n" for r in range(QA, IDX)) + "".join(f"    v_mov_b32 v{r}, 0\n" for r in range(SA, QA)) + "    s_waitcnt lgkmcnt(0)\n"

init += "    s_mov_b32 s44, 0x3ffff\n    s_mov_b32 s45, 0x3ffff\n"
pA = {2: ["P3"], 5: ["L", "X"], 13: ["P0"], 18: ["P1"], 22: ["M0"], 26: ["P2"], 29: ["M1"]}
pD = {2: ["P3"], 6: ["X"], 8: ["L"], 14: ["P0"], 18: ["P1"], 22: ["M0"], 26: ["P2"], 30: ["M1"]}
for nm, p in (("A", pA), ("D", pD)):
  for ex in (0, 1):
    body8 = "".join(step(n, p, ex) for n in range(8))
    body32 = "".join(step(n, p, ex) for n in range(32))
    for blk in (256, 512):
        mk(f"c_{nm}_ex{ex}_l8_b{blk}.s", [body8], block=blk, iters=4, vgpr=160, lds=65536, init=init)
        mk(f"c_{nm}_ex{ex}_u32_b{blk}.s", [body32], block=blk, iters=1, vgpr=160, lds=65536, init=init)
open("list7.txt", "w").write(" ".join(names))
```

```python
import mbgen
from mbgen import make
names = []
def mk(name, bodies, **kw):
    make(name, bodies, **kw); names.append(name)
SA, SB = 16, 48
QA, QB = 112, 116
QX0, QX1 = 120, 122
IDX = 156
AK, AX, AV = 157, 158, 159
def build(oacc="v", kv="v", pat=None, cinit="4.0", nsteps=32):
    OA, OB = (80, 96) if oacc == "v" else (0, 16)
    base = 124 if kv == "v" else 32
    KM = [base, base + 4]; KX = [base + 8, base + 12]; VV = [base + 16, base + 24]
    def R(t, a, n): return f"{t}[{a}:{a+n-1}]"
    def step(n):
        cur, nxt = (SA, SB) if n % 2 == 0 else (SB, SA)
        p = n % 2
        def pv(g, S, par):
            O = OA if g < 2 else OB
            V = VV[par] + 4 * (g % 2)
            return f"    v_smfmac_f32_32x32x32_bf16 {R(oacc,O,16)}, {R(kv,V,4)}, v[{S+8*g}:{S+8*g+7}], v{IDX}\n"
        kxb = KX[((n + 1) // 4) % 2] + 2 * (((n + 1) % 4) // 2)
        qx = QX0 if (n + 1) % 2 == 0 else QX1
        km = KM[(n + 1) % 2]; vb = VV[(n + 1) % 2]
        loads = "    s_waitcnt lgkmcnt(0)\n    s_mov_b64 exec, s[44:45]\n"
        loads += f"    ds_read_b128 {R(kv,vb,4)}, v{AV} offset:{32768 + (n%16)*2048}\n    ds_read_b128 {R(kv,vb+4,4)}, v{AV} offset:{32768 + (n%16)*2048 + 1024}\n    s_mov_b64 exec, -1\n"
        loads += f"    ds_read_b128 {R(kv,KM[n%2],4)}, v{AK} offset:{(n%24)*1024}\n"
        if n % 4 == 0: loads += f"    ds_read_b128 {R(kv,KX[((n//4)+1)%2],4)}, v{AX} offset:{24576 + (n%8)*512}\n"
        items = {"P3": pv(3, nxt, 1 - p), "X": f"    v_mfma_f32_32x32x4_2b_bf16 v[{nxt}:{nxt+31}], {R(kv,kxb,2)}, v[{qx}:{qx+1}], {cinit}\n",
                 "P0": pv(0, cur, p), "P1": pv(1, cur, p), "P2": pv(2, cur, p),
                 "M0": f"    v_mfma_f32_32x32x16_bf16 v[{nxt}:{nxt+15}], {R(kv,km,4)}, v[{QA}:{QA+3}], v[{nxt}:{nxt+15}]\n",
                 "M1": f"    v_mfma_f32_32x32x16_bf16 v[{nxt+16}:{nxt+31}], {R(kv,km,4)}, v[{QB}:{QB+3}], v[{nxt+16}:{nxt+31}]\n", "L": loads}
        s = ""
        if n % 8 == 0: s += "    s_setprio 3\n"
        if n % 8 == 3: s += "    s_setprio 2\n"
        if n % 8 == 5: s += "    s_setprio 1\n"
        if n % 8 == 7: s += "    s_setprio 0\n"
        for i in range(33):
            for nm in pat.get(i, []): s += items[nm]
            if i < 32: s += f"    v_exp_f32 v{cur+i}, v{cur+i}\n"
        return s
    init = f"""
    v_and_b32 v3, 63, v0
    v_lshlrev_b32 v{AK}, 4, v3
    v_lshlrev_b32 v{AV}, 4, v3
    v_and_b32 v3, 31, v0
    v_lshlrev_b32 v{AX}, 4, v3
    v_mov_b32 v{IDX}, 0xdddddddd
    v_lshlrev_b32 v4, 4, v0
    s_mov_b32 s44, 0x3ffff
    s_mov_b32 s45, 0x3ffff
"""
    for i in range(32): init += f"    v_cvt_pk_bf16_f32 v{16+i}, v{16+2*i}, v{17+2*i}\n"
    for i in range(8): init += f"    ds_write_b128 v4, v[{16+4*i}:{19+4*i}] offset:{i*8192}\n"
    for i in range(12):
        init += f"    v_mul_f32 v{80+2*i}, 0.5, v{80+2*i}\n    v_mul_f32 v{81+2*i}, 0.5, v{81+2*i}\n    v_cvt_pk_bf16_f32 v{QA+i}, v{80+2*i}, v{81+2*i}\n"
    init += f"    v_mov_b32 v{QX0+1}, 0\n    v_mov_b32 v{QX1}, 0\n"
    for r in range(32):
        init += (f"    v_mov_b32 v{base+r}, 0\n" if kv == "v" else f"    v_accvgpr_write_b32 a{base+r}, 0\n")
        init += (f"    v_mov_b32 v{OA+r}, 0\n" if oacc == "v" else f"    v_accvgpr_write_b32 a{OA+r}, 0\n")
    init += "".join(f"    v_mov_b32 v{r}, 0\n" for r in range(SA, 80)) + "    s_waitcnt lgkmcnt(0)\n"
    return "".join(step(n) for n in range(nsteps)), init
pA = {2: ["P3"], 5: ["L", "X"], 13: ["P0"], 18: ["P1"], 22: ["M0"], 26: ["P2"], 29: ["M1"]}
pB = {2: ["P3"], 5: ["L", "X"], 13: ["P0"], 18: ["P1"], 23: ["M0"], 26: ["M1"], 29: ["P2"]}
import struct
def f32(x): return struct.unpack("<I", struct.pack("<f", x))[0]
for nm, c in [("c4i", None), ("r0", 0.0), ("r4", 4.0), ("r12", 12.0), ("r24", 24.0), ("r48", 48.0), ("r96", 96.0)]:
    body, init = build(pat=pA, cinit="4.0" if c is None else "v[160:191]")
    if c is not None: init += "".join(f"    v_mov_b32 v{160+r}, {hex(f32(c))}\n" for r in range(32))
    mk(f"z_{nm}.s", [body], block=512, iters=1, vgpr=160, lds=65536, init=init)
    t = open(f"z_{nm}.s").read().replace(".amdhsa_next_free_vgpr 160", ".amdhsa_next_free_vgpr 256").replace(".amdhsa_accum_offset 160", ".amdhsa_accum_offset 256")
    open(f"z_{nm}.s", "w").write(t)
open("list8.txt", "w").write(" ".join(names))
```
